```python
import torch

def _softmax(x, axis=-1):
    return torch.softmax(x, dim=axis)
def _gelu(x):
    return torch.nn.functional.gelu(x, approximate="tanh")
def _silu(x):
    return torch.nn.functional.silu(x)
def _sigmoid(x):
    return torch.sigmoid(x)
def _layernorm(x, axis=-1, eps=1e-5):
    m = x.mean(dim=axis, keepdim=True)
    v = x.var(dim=axis, keepdim=True, unbiased=False)
    return (x - m) / torch.sqrt(v + eps)
def _scatter_add(tgt, idx, src, axis=0):
    return tgt.clone().index_add_(axis, idx, src)
def _segment_sum(src, seg, n):
    out = torch.zeros((n,) + src.shape[1:], dtype=src.dtype)
    return out.index_add_(0, seg, src)
def _pad(x, pw):
    flat = tuple(v for pair in reversed(pw) for v in pair)
    return torch.nn.functional.pad(x, flat)

kernel_name = 'sequential_preLN__ssm_conv_s4__dense_activation_gelu__prompt'

def setup_inputs():

    _w = (lambda a: (lambda t: t.to(torch.bfloat16) if t.is_floating_point() else t)(torch.as_tensor(a)))
    def _A_setup():
        B, L, D, N = 1, 2048, 640, 192
        A_re = -(lambda _x: torch.exp(torch.as_tensor(_x)))((lambda *s: torch.randn(*s, dtype=torch.bfloat16) * 6.4)(D, N))
        A_im = torch.pi * (lambda *s: torch.randn(*s, dtype=torch.bfloat16) * 0.05)(D, N)
        B_re = (lambda *s: torch.randn(*s, dtype=torch.bfloat16) * 0.05)(D, N)
        B_im = (lambda *s: torch.randn(*s, dtype=torch.bfloat16) * 0.05)(D, N)
        C_re = (lambda *s: torch.randn(*s, dtype=torch.bfloat16) * 0.05)(D, N)
        C_im = (lambda *s: torch.randn(*s, dtype=torch.bfloat16) * 0.05)(D, N)
        log_dt = (lambda *s: torch.randn(*s, dtype=torch.bfloat16) * 0.05)(D) * 0.5 - 4.0
        Dskip = (lambda *s: torch.randn(*s, dtype=torch.bfloat16) * 0.05)(D)
        return {
            "u": _w((lambda *s: torch.randn(*s, dtype=torch.bfloat16) * 0.05)(B, L, D)),
            "A_re": _w(A_re),
            "A_im": _w(A_im),
            "B_re": _w(B_re),
            "B_im": _w(B_im),
            "C_re": _w(C_re),
            "C_im": _w(C_im),
            "log_dt": _w(log_dt),
            "Dskip": _w(Dskip),
        }
    _A_in = _A_setup()

    def _B_setup():
        B, S, D, F = 1, 2048, 640, 1536
        return {
            "x": _w((lambda *s: torch.randn(*s, dtype=torch.bfloat16) * 0.05)(B, S, D)),
            "w1": _w((lambda *s: torch.randn(*s, dtype=torch.bfloat16) * 0.8)(D, F) * (D ** -0.5)),
            "b1": _w((lambda *s: torch.randn(*s, dtype=torch.bfloat16) * 12.8)(F) * 0.01),
            "w2": _w((lambda *s: torch.randn(*s, dtype=torch.bfloat16) * 0.4)(F, D) * (F ** -0.5)),
            "b2": _w((lambda *s: torch.randn(*s, dtype=torch.bfloat16) * 6.4)(D) * 0.01),
        }
    _B_in = _B_setup()

    return {
        "A_u": _A_in["u"],
        "A_A_re": _A_in["A_re"],
        "A_A_im": _A_in["A_im"],
        "A_B_re": _A_in["B_re"],
        "A_B_im": _A_in["B_im"],
        "A_C_re": _A_in["C_re"],
        "A_C_im": _A_in["C_im"],
        "A_log_dt": _A_in["log_dt"],
        "A_Dskip": _A_in["Dskip"],
        "B_x": _B_in["x"],
        "B_w1": _B_in["w1"],
        "B_b1": _B_in["b1"],
        "B_w2": _B_in["w2"],
        "B_b2": _B_in["b2"],
    }

def reference(A_u, A_A_re, A_A_im, A_B_re, A_B_im, A_C_re, A_C_im, A_log_dt, A_Dskip, B_x, B_w1, B_b1, B_w2, B_b2):
    def _A_ref(u, A_re, A_im, B_re, B_im, C_re, C_im, log_dt, Dskip):
        Bsz, L, D = u.shape
        dt = torch.exp(log_dt)[:, None]
        A = A_re + 1j * A_im
        Bc = B_re + 1j * B_im
        Cc = C_re + 1j * C_im
        logdA = dt * A
        dB = dt * Bc
        l = (lambda x, dt: x.to(dt))(torch.arange(L), A_re.dtype)
        P = torch.exp(logdA[:, :, None] * l[None, None, :])
        K = torch.einsum("dn,dnl,dn->dl", Cc, P, dB).real
        L2 = 2 * L
        Kp = _pad(K, ((0, 0), (0, L)))
        up = (lambda x, *d: x.permute(*d))(u, 0, 2, 1)
        up = _pad(up, ((0, 0), (0, 0), (0, L)))
        Kf = (lambda x, axes=(-2,-1): torch.fft.rfft2(x.float(), dim=axes))(Kp[:, None, :], axes=(-2, -1))
        Uf = (lambda x, axes=(-2,-1): torch.fft.rfft2(x.float(), dim=axes))(up[:, :, None, :], axes=(-2, -1))
        Yf = Uf * Kf[None, :, :, :]
        y = (lambda x, s, axes=(-2,-1): torch.fft.irfft2(x, s=s, dim=axes).to(torch.bfloat16))(Yf, (1, L2), axes=(-2, -1))[:, :, 0, :L]
        y = (lambda x, *d: x.permute(*d))(y, 0, 2, 1) + u * Dskip[None, None, :]
        return y

    def _B_ref(x, w1, b1, w2, b2):
        h = torch.einsum("bsd,df->bsf", x, w1) + b1
        h = _gelu(h)
        return torch.einsum("bsf,fd->bsd", h, w2) + b2

    x = A_u
    h = x + _A_ref(_layernorm(x, axis=-1), A_A_re, A_A_im, A_B_re, A_B_im, A_C_re, A_C_im, A_log_dt, A_Dskip)
    h2 = h + _B_ref(_layernorm(h, axis=-1), B_w1, B_b1, B_w2, B_b2)
    return h2
```

```python
import sys
NEXTRA = int(sys.argv[1]) if len(sys.argv)>1 else 0
OUT = sys.argv[2] if len(sys.argv)>2 else "naive.s"
U, KT, H, HN, ACT = 0x0, 0x400000, 0x800000, 0xC00000, 0x1000000
K = {}
def wave_sum(v, t):
    s = ""
    for off in (0x041F,0x081F,0x101F,0x201F,0x401F):
        s += f"ds_swizzle_b32 {t}, {v} offset:{off}\ns_waitcnt lgkmcnt(0)\nv_add_f32 {v}, {v}, {t}\n"
    s += f"v_mov_b32 {t}, {v}\ns_nop 1\nv_permlane32_swap_b32 {t}, {v}\ns_nop 1\nv_add_f32 {v}, {v}, {t}\n"
    return s
def ln(src_arg, src_off, dst_off):
    s = f"""
s_cmp_ge_u32 s2, 2048
s_cbranch_scc1 E@
s_load_dwordx2 s[4:5], s[0:1], {src_arg}
s_load_dwordx2 s[6:7], s[0:1], 128
s_waitcnt lgkmcnt(0)
s_add_u32 s4, s4, {src_off}
s_addc_u32 s5, s5, 0
s_add_u32 s6, s6, {dst_off}
s_addc_u32 s7, s7, 0
s_mul_i32 s8, s2, 1280
v_lshlrev_b32 v1, 2, v0
v_add_u32 v1, s8, v1
"""
    for j in range(5): s += f"global_load_dword v{10+j}, v1, s[4:5] offset:{256*j}\n"
    s += "s_waitcnt vmcnt(0)\nv_mov_b32 v2, 0\n"
    for j in range(5):
        s += f"v_lshlrev_b32 v{20+2*j}, 16, v{10+j}\nv_and_b32 v{21+2*j}, 0xffff0000, v{10+j}\n"
    for j in range(10): s += f"v_add_f32 v2, v2, v{20+j}\n"
    s += wave_sum("v2","v3")
    s += "v_mul_f32 v2, 0x3acccccd, v2\nv_mov_b32 v4, 0\n"
    for j in range(10): s += f"v_sub_f32 v5, v{20+j}, v2\nv_fmac_f32 v4, v5, v5\n"
    s += wave_sum("v4","v3")
    s += """v_mul_f32 v4, 0x3acccccd, v4
v_cvt_pk_bf16_f32 v2, v2, v4
v_and_b32 v4, 0xffff0000, v2
v_lshlrev_b32 v2, 16, v2
v_add_f32 v4, 0x3727c5ac, v4
v_cvt_pk_bf16_f32 v4, v4, v4
v_lshlrev_b32 v4, 16, v4
v_sqrt_f32 v4, v4
s_nop 0
v_cvt_pk_bf16_f32 v4, v4, v4
v_lshlrev_b32 v4, 16, v4
v_rcp_f32 v4, v4
s_nop 0
"""
    for j in range(5):
        s += f"""v_sub_f32 v5, v{20+2*j}, v2
v_sub_f32 v6, v{21+2*j}, v2
v_cvt_pk_bf16_f32 v5, v5, v6
v_and_b32 v6, 0xffff0000, v5
v_lshlrev_b32 v5, 16, v5
v_mul_f32 v5, v5, v4
v_mul_f32 v6, v6, v4
v_cvt_pk_bf16_f32 v{10+j}, v5, v6
global_store_dword v1, v{10+j}, s[6:7] offset:{256*j}
"""
    s += "s_waitcnt vmcnt(0)\nE@:\ns_endpgm\n"
    return s
K["ln1_kernel"] = (ln(0,0,U), (2048,64))
K["kgen_kernel"] = (f"""
s_cmp_ge_u32 s2, 640
s_cbranch_scc1 E@
s_load_dwordx4 s[4:7], s[0:1], 8
s_load_dwordx4 s[8:11], s[0:1], 24
s_load_dwordx4 s[12:15], s[0:1], 40
s_load_dwordx2 s[16:17], s[0:1], 56
s_load_dwordx2 s[18:19], s[0:1], 128
s_waitcnt lgkmcnt(0)
v_cvt_f32_u32 v1, v0
v_add_u32 v2, 0x4280, v0
v_lshlrev_b32 v2, 16, v2
v_cmp_gt_u32 vcc, 128, v0
s_nop 1
v_cndmask_b32 v1, v2, v1, vcc
; dt
s_lshl_b32 s20, s2, 1
v_mov_b32 v3, s20
global_load_ushort v3, v3, s[16:17]
s_waitcnt vmcnt(0)
v_lshlrev_b32 v3, 16, v3
v_mul_f32 v3, 0x3fb8aa3b, v3
v_exp_f32 v3, v3
s_nop 0
v_cvt_pk_bf16_f32 v3, v3, v3
v_lshlrev_b32 v3, 16, v3
v_mov_b32 v4, 0
s_mul_i32 s20, s2, 384
s_mov_b32 s21, 0
L@:
v_mov_b32 v5, s20
global_load_ushort v10, v5, s[4:5]
global_load_ushort v11, v5, s[6:7]
global_load_ushort v12, v5, s[8:9]
global_load_ushort v13, v5, s[10:11]
global_load_ushort v14, v5, s[12:13]
global_load_ushort v15, v5, s[14:15]
s_waitcnt vmcnt(0)
v_lshlrev_b32 v10, 16, v10
v_lshlrev_b32 v11, 16, v11
v_lshlrev_b32 v12, 16, v12
v_lshlrev_b32 v13, 16, v13
v_lshlrev_b32 v14, 16, v14
v_lshlrev_b32 v15, 16, v15
v_mul_f32 v10, v10, v3
v_mul_f32 v11, v11, v3
v_mul_f32 v12, v12, v3
v_mul_f32 v13, v13, v3
v_mul_f32 v16, v14, v12
v_fma_f32 v16, -v15, v13, v16
v_mul_f32 v17, v14, v13
v_fma_f32 v17, v15, v12, v17
v_mul_f32 v10, v10, v1
v_mul_f32 v11, v11, v1
v_mul_f32 v10, 0x3fb8aa3b, v10
v_mul_f32 v11, 0.15915494, v11
v_fract_f32 v11, v11
v_exp_f32 v10, v10
v_cos_f32 v12, v11
v_sin_f32 v13, v11
s_nop 0
v_mul_f32 v12, v12, v16
v_fma_f32 v12, -v13, v17, v12
v_fmac_f32 v4, v10, v12
s_add_u32 s20, s20, 2
s_add_u32 s21, s21, 1
s_cmp_lt_u32 s21, 192
s_cbranch_scc1 L@
s_mov_b32 s22, 2560
v_mul_lo_u32 v5, v0, s22
s_lshl_b32 s20, s2, 2
s_add_u32 s20, s20, {KT}
v_add_u32 v5, s20, v5
global_store_dword v5, v4, s[18:19]
s_waitcnt vmcnt(0)
E@:
s_endpgm
""", (640,704))
K["conv_kernel"] = (f"""
s_cmp_ge_u32 s2, 2048
s_cbranch_scc1 E@
s_load_dwordx2 s[4:5], s[0:1], 0
s_load_dwordx2 s[6:7], s[0:1], 64
s_load_dwordx2 s[8:9], s[0:1], 128
s_waitcnt lgkmcnt(0)
s_add_u32 s10, s8, {KT}
s_addc_u32 s11, s9, 0
v_lshlrev_b32 v1, 1, v0
v_lshlrev_b32 v2, 2, v0
s_mul_i32 s12, s2, 1280
v_add_u32 v3, s12, v1
v_mov_b32 v9, v3
v_mov_b32 v4, 0
s_mov_b32 s13, 0
s_mov_b32 s22, 2560
L@:
v_cvt_f32_u32 v5, s13
v_cvt_pk_bf16_f32 v5, v5, v5
v_and_b32 v5, 0xffff, v5
v_subrev_u32 v5, 0x4280, v5
v_mov_b32 v6, s13
v_cmp_gt_u32 vcc, 128, v6
s_nop 1
v_cndmask_b32 v5, v5, v6, vcc
v_mul_lo_u32 v5, v5, s22
v_add_u32 v5, v5, v2
global_load_dword v7, v5, s[10:11]
global_load_ushort v8, v3, s[8:9]
s_waitcnt vmcnt(0)
v_lshlrev_b32 v8, 16, v8
v_fmac_f32 v4, v7, v8
v_subrev_u32 v3, 1280, v3
s_add_u32 s13, s13, 1
s_cmp_le_u32 s13, s2
s_cbranch_scc1 L@
global_load_ushort v7, v9, s[8:9]
global_load_ushort v8, v9, s[4:5]
global_load_ushort v10, v1, s[6:7]
s_waitcnt vmcnt(0)
v_lshlrev_b32 v7, 16, v7
v_lshlrev_b32 v8, 16, v8
v_lshlrev_b32 v10, 16, v10
v_mul_f32 v7, v7, v10
v_cvt_pk_bf16_f32 v4, v4, v7
v_and_b32 v7, 0xffff0000, v4
v_lshlrev_b32 v4, 16, v4
v_add_f32 v4, v4, v7
v_cvt_pk_bf16_f32 v4, v4, v4
v_lshlrev_b32 v4, 16, v4
v_add_f32 v4, v4, v8
v_cvt_pk_bf16_f32 v4, v4, v4
v_add_u32 v9, {H}, v9
global_store_short v9, v4, s[8:9]
s_waitcnt vmcnt(0)
E@:
s_endpgm
""", (2048,640))
K["ln2_kernel"] = (ln(128,H,HN), (2048,64))
K["g1_kernel"] = (f"""
s_cmp_ge_u32 s2, 4096
s_cbranch_scc1 E@
s_load_dwordx4 s[4:7], s[0:1], 80
s_load_dwordx2 s[8:9], s[0:1], 128
s_waitcnt lgkmcnt(0)
s_lshr_b32 s10, s2, 1
s_and_b32 s11, s2, 1
s_mul_i32 s11, s11, 768
v_add_u32 v1, s11, v0
v_lshlrev_b32 v1, 1, v1
v_mov_b32 v2, v1
s_mul_i32 s12, s10, 1280
s_add_u32 s12, s12, {HN}
v_mov_b32 v3, s12
v_mov_b32 v4, 0
s_mov_b32 s13, 0
L@:
global_load_ushort v7, v2, s[4:5]
global_load_ushort v8, v3, s[8:9]
s_waitcnt vmcnt(0)
v_lshlrev_b32 v7, 16, v7
v_lshlrev_b32 v8, 16, v8
v_fmac_f32 v4, v7, v8
v_add_u32 v2, 3072, v2
v_add_u32 v3, 2, v3
s_add_u32 s13, s13, 1
s_cmp_lt_u32 s13, 640
s_cbranch_scc1 L@
global_load_ushort v7, v1, s[6:7]
s_waitcnt vmcnt(0)
v_lshlrev_b32 v7, 16, v7
v_add_f32 v4, v4, v7
v_mul_f32 v5, v4, v4
v_mov_b32 v6, 0xc0135761
v_mov_b32 v7, 0xbdd2d3e8
v_fma_f32 v5, v5, v7, v6
v_mul_f32 v5, v5, v4
v_exp_f32 v5, v5
s_nop 0
v_add_f32 v5, 1.0, v5
v_rcp_f32 v5, v5
s_nop 0
v_mul_f32 v4, v4, v5
v_cvt_pk_bf16_f32 v4, v4, v4
s_mul_i32 s12, s10, 3072
s_add_u32 s12, s12, {ACT}
v_add_u32 v1, s12, v1
global_store_short v1, v4, s[8:9]
s_waitcnt vmcnt(0)
E@:
s_endpgm
""", (4096,768))
K["g2_kernel"] = (f"""
s_cmp_ge_u32 s2, 2048
s_cbranch_scc1 E@
s_load_dwordx4 s[4:7], s[0:1], 96
s_load_dwordx2 s[8:9], s[0:1], 128
s_load_dwordx2 s[14:15], s[0:1], 112
s_waitcnt lgkmcnt(0)
v_lshlrev_b32 v1, 1, v0
v_mov_b32 v2, v1
s_mul_i32 s12, s2, 3072
s_add_u32 s12, s12, {ACT}
v_mov_b32 v3, s12
v_mov_b32 v4, 0
s_mov_b32 s13, 0
L@:
global_load_ushort v7, v2, s[4:5]
global_load_ushort v8, v3, s[8:9]
s_waitcnt vmcnt(0)
v_lshlrev_b32 v7, 16, v7
v_lshlrev_b32 v8, 16, v8
v_fmac_f32 v4, v7, v8
v_add_u32 v2, 1280, v2
v_add_u32 v3, 2, v3
s_add_u32 s13, s13, 1
s_cmp_lt_u32 s13, 1536
s_cbranch_scc1 L@
s_mul_i32 s12, s2, 1280
v_add_u32 v9, s12, v1
v_add_u32 v10, {H}, v9
global_load_ushort v7, v1, s[6:7]
global_load_ushort v8, v10, s[8:9]
s_waitcnt vmcnt(0)
v_lshlrev_b32 v7, 16, v7
v_lshlrev_b32 v8, 16, v8
v_add_f32 v4, v4, v7
v_add_f32 v4, v4, v8
v_cvt_pk_bf16_f32 v4, v4, v4
global_store_short v9, v4, s[14:15]
s_waitcnt vmcnt(0)
E@:
s_endpgm
""", (2048,640))
K["empty_kernel"] = ("s_endpgm\n", (256,256))
order = ["ln1_kernel","kgen_kernel","conv_kernel","ln2_kernel","g1_kernel","g2_kernel"] + ["empty_kernel"]*NEXTRA
out = []
for k in order:
    g,b = K[k][1]
    out.append(f"; @launch kernel={k} grid=({g},1,1) block=({b},1,1) lds=0")
out.append('.amdgcn_target "amdgcn-amd-amdhsa--gfx950"\n.text')
used = list(dict.fromkeys(order))
for k in used:
    out.append(f".globl {k}\n.p2align 8\n.type {k},@function\n{k}:\n" + K[k][0].replace("@", "_"+k))
out.append('.section .rodata,"a"')
for k in used:
    out.append(f""".p2align 6
.amdhsa_kernel {k}
  .amdhsa_next_free_vgpr 32
  .amdhsa_next_free_sgpr 32
  .amdhsa_accum_offset 32
  .amdhsa_group_segment_fixed_size 0
  .amdhsa_kernarg_size 136
  .amdhsa_user_sgpr_count 2
  .amdhsa_user_sgpr_kernarg_segment_ptr 1
  .amdhsa_system_sgpr_workgroup_id_x 1
.end_amdhsa_kernel""")
open(OUT,"w").write("\n".join(out)+"\n")
```
